```python
import torch

def _softmax(x, axis=-1):
    return torch.softmax(x, dim=axis)
def _gelu(x):
    return torch.nn.functional.gelu(x, approximate="tanh")
def _silu(x):
    return torch.nn.functional.silu(x)
def _sigmoid(x):
    return torch.sigmoid(x)
def _layernorm(x, axis=-1, eps=1e-5):
    m = x.mean(dim=axis, keepdim=True)
    v = x.var(dim=axis, keepdim=True, unbiased=False)
    return (x - m) / torch.sqrt(v + eps)
def _scatter_add(tgt, idx, src, axis=0):
    return tgt.clone().index_add_(axis, idx, src)
def _segment_sum(src, seg, n):
    out = torch.zeros((n,) + src.shape[1:], dtype=src.dtype)
    return out.index_add_(0, seg, src)
def _pad(x, pw):
    flat = tuple(v for pair in reversed(pw) for v in pair)
    return torch.nn.functional.pad(x, flat)

kernel_name = 'sequential_preLN__ssm_conv_h3__mixer_channel_mlp__prompt'

def setup_inputs():

    _w = (lambda a: (lambda t: t.to(torch.bfloat16) if t.is_floating_point() else t)(torch.as_tensor(a)))
    def _A_setup():
        B, S, D = 1, 2048, 512
        ks = 4
        return {
            "q": _w((lambda *s: torch.randn(*s, dtype=torch.bfloat16) * 0.05)(B, S, D)),
            "k": _w((lambda *s: torch.randn(*s, dtype=torch.bfloat16) * 0.2)(B, S, D)),
            "v": _w((lambda *s: torch.randn(*s, dtype=torch.bfloat16) * 0.2)(B, S, D)),
            "shift_k": _w((lambda *s: torch.randn(*s, dtype=torch.bfloat16) * 0.2)(D, ks) * 0.5),
            "ssm_k": _w((lambda *s: torch.randn(*s, dtype=torch.bfloat16) * 0.8)(D, S) * (1.0 / S ** 0.5)),
            "ssm_D": _w((lambda *s: torch.randn(*s, dtype=torch.bfloat16) * 0.2)(D)),
        }
    _A_in = _A_setup()

    def _B_setup():
        B, S, D, F = 1, 2048, 512, 1792
        return {
            "x": _w((lambda *s: torch.randn(*s, dtype=torch.bfloat16) * 0.05)(B, S, D)),
            "w1": _w((lambda *s: torch.randn(*s, dtype=torch.bfloat16) * 0.8)(D, F) * (D ** -0.5)),
            "b1": _w((lambda *s: torch.randn(*s, dtype=torch.bfloat16) * 0.4)(F)),
            "w2": _w((lambda *s: torch.randn(*s, dtype=torch.bfloat16) * 0.05)(F, D) * (F ** -0.5)),
            "b2": _w((lambda *s: torch.randn(*s, dtype=torch.bfloat16) * 0.05)(D)),
        }
    _B_in = _B_setup()

    return {
        "A_q": _A_in["q"],
        "A_k": _A_in["k"],
        "A_v": _A_in["v"],
        "A_shift_k": _A_in["shift_k"],
        "A_ssm_k": _A_in["ssm_k"],
        "A_ssm_D": _A_in["ssm_D"],
        "B_x": _B_in["x"],
        "B_w1": _B_in["w1"],
        "B_b1": _B_in["b1"],
        "B_w2": _B_in["w2"],
        "B_b2": _B_in["b2"],
    }

def reference(A_q, A_k, A_v, A_shift_k, A_ssm_k, A_ssm_D, B_x, B_w1, B_b1, B_w2, B_b2):
    def _A_ref(q, k, v, shift_k, ssm_k, ssm_D):
        B, S, D = q.shape
        ks = shift_k.shape[-1]
        k_pad = _pad(k, ((0, 0), (ks - 1, 0), (0, 0)))
        k_shift = torch.zeros_like(k)
        for t in range(ks):
            k_shift = k_shift + k_pad[:, t:t + S, :] * shift_k[:, ks - 1 - t][None, None, :]
        kv = k_shift * v
        L = 2 * S
        kv_pad = _pad(kv, ((0, 0), (0, S), (0, 0)))
        kf_pad = _pad(ssm_k, ((0, 0), (0, S)))
        kv_f = (lambda x, axes=(-2,-1): torch.fft.rfft2(x.float(), dim=axes))(kv_pad[:, None, :, :], axes=(1, 2))
        kf_f = (lambda x, axes=(-2,-1): torch.fft.rfft2(x.float(), dim=axes))(kf_pad[:, None, :], axes=(1, 2))
        kf_f = (lambda x, *d: x.permute(*d))(kf_f, 1, 2, 0)
        y_f = kv_f * kf_f[None, :, :, :]
        y = (lambda x, s, axes=(-2,-1): torch.fft.irfft2(x, s=s, dim=axes).to(torch.bfloat16))(y_f, (1, L), axes=(1, 2))[:, 0, :S, :]
        y = y + kv * ssm_D[None, None, :]
        return q * y

    def _B_ref(x, w1, b1, w2, b2):
        y = _layernorm(x, axis=-1)
        h = _gelu(torch.einsum("bsd,df->bsf", y, w1) + b1)
        return torch.einsum("bsf,fd->bsd", h, w2) + b2

    x = A_q
    h = x + _A_ref(_layernorm(x, axis=-1), A_k, A_v, A_shift_k, A_ssm_k, A_ssm_D)
    h2 = h + _B_ref(_layernorm(h, axis=-1), B_w1, B_b1, B_w2, B_b2)
    return h2
```

```python
import re

REG_RE = re.compile(r'(?<![\w.])([vas])(?:(\d+)|\[(\d+):(\d+)\])(?![\w])')

TRANS = ('v_exp_f32', 'v_log_f32', 'v_rcp_f32', 'v_rsq_f32', 'v_sqrt_f32', 'v_sin_f32', 'v_cos_f32', 'v_rcp_iflag_f32')

def regs_of(op):
    out = set()
    op = op.strip()
    for m in REG_RE.finditer(op):
        k = m.group(1)
        if m.group(2) is not None:
            out.add((k, int(m.group(2))))
        else:
            for i in range(int(m.group(3)), int(m.group(4)) + 1):
                out.add((k, i))
    if re.search(r'\bvcc\b', op):
        out.add(('s', 'vcc'))
    if re.search(r'\bm0\b', op):
        out.add(('s', 'm0'))
    if re.search(r'\bexec\b', op):
        out.add(('s', 'exec'))
    return out

def split_ops(rest):
    ops, depth, cur = [], 0, ''
    for ch in rest:
        if ch == '[': depth += 1
        if ch == ']': depth -= 1
        if ch == ',' and depth == 0:
            ops.append(cur.strip()); cur = ''
        else:
            cur += ch
    if cur.strip(): ops.append(cur.strip())
    return ops

class Ins:
    __slots__ = ('text', 'mn', 'ops', 'cls', 'wr', 'rd', 'passes', 'srcc', 'srcab', 'dpp', 'storedata', 'nopn', 'lds_dma')
    def __init__(self, text):
        self.text = text
        t = text.split(';')[0].strip()
        parts = t.split(None, 1)
        mn = parts[0]
        self.mn = mn
        rest = parts[1] if len(parts) > 1 else ''
        ops = split_ops(rest)
        self.ops = ops
        self.wr, self.rd = set(), set()
        self.passes = 0; self.srcc = set(); self.srcab = set(); self.dpp = False
        self.storedata = set(); self.nopn = 0; self.lds_dma = False
        if mn == 's_nop':
            self.cls = 'nop'; self.nopn = int(ops[0], 0) + 1; return
        if mn.startswith('v_mfma'):
            self.cls = 'mfma'
            self.passes = 8 if '32x32' in mn else 4
            self.wr = regs_of(ops[0]); self.srcab = regs_of(ops[1]) | regs_of(ops[2]); self.srcc = regs_of(ops[3].split()[0])
            self.rd = self.srcab | self.srcc
            return
        if mn.startswith('v_'):
            self.cls = 'valu'
            self.dpp = ('quad_perm' in t or 'row_' in t or '_dpp' in mn)
            if mn.startswith('v_cmp'):
                self.wr = regs_of(ops[0])
                for o in ops[1:]: self.rd |= regs_of(o)
            elif mn.startswith('v_permlane') and 'swap' in mn:
                self.wr = regs_of(ops[0]) | regs_of(ops[1]); self.rd = set(self.wr)
            elif mn.startswith(('v_add_co', 'v_sub_co', 'v_addc_co', 'v_subb_co', 'v_subrev_co')):
                self.wr = regs_of(ops[0]) | regs_of(ops[1])
                for o in ops[2:]: self.rd |= regs_of(o)
            else:
                self.wr = regs_of(ops[0])
                for o in ops[1:]: self.rd |= regs_of(o)
                if mn.startswith(('v_fmac', 'v_dot2c', 'v_pk_fmac', 'v_writelane')) or self.dpp:
                    self.rd |= self.wr
                if mn.startswith('v_cndmask') and len(ops) == 3:
                    self.rd.add(('s', 'vcc'))
            return
        if mn.startswith(('buffer_', 'global_', 'flat_')):
            self.cls = 'vmem'
            is_lds = bool(re.search(r'\blds\b', t)) or 'load_lds' in mn
            self.lds_dma = is_lds
            if 'load' in mn and not is_lds:
                self.wr = regs_of(ops[0])
                for o in ops[1:]: self.rd |= regs_of(o)
            elif is_lds:
                for o in ops: self.rd |= regs_of(o)
                self.rd.add(('s', 'm0'))
            elif 'atomic' in mn:
                for o in ops: self.rd |= regs_of(o)
                if 'sc0' in t:
                    self.wr = regs_of(ops[0])
            elif mn.startswith(('buffer_wbl2', 'buffer_inv')):
                pass
            else:
                for o in ops: self.rd |= regs_of(o)
                data = ops[0] if mn.startswith('buffer_') else ops[1]
                if 'x4' in mn or 'x3' in mn:
                    self.storedata = regs_of(data)
            return
        if mn.startswith('ds_'):
            self.cls = 'ds'
            if mn.startswith(('ds_read', 'ds_bpermute', 'ds_permute', 'ds_swizzle')) or 'rtn' in mn:
                self.wr = regs_of(ops[0])
                for o in ops[1:]: self.rd |= regs_of(o)
            else:
                for o in ops: self.rd |= regs_of(o)
            return
        if mn.startswith('s_'):
            self.cls = 'salu'
            if mn.startswith(('s_waitcnt', 's_barrier', 's_branch', 's_cbranch', 's_endpgm', 's_setprio', 's_sleep', 's_cmp', 's_bitcmp')):
                for o in ops: self.rd |= regs_of(o)
            else:
                if ops:
                    self.wr = regs_of(ops[0])
                for o in ops[1:]: self.rd |= regs_of(o)
                if 'saveexec' in mn: self.wr.add(('s', 'exec'))
            return
        raise ValueError('unknown instr: ' + text)

def need_between(p, c):
    n = 0
    vw = {r for r in p.wr if r[0] in 'va'}
    sw = {r for r in p.wr if r[0] == 's'}
    if p.cls == 'valu':
        isdl = p.mn.startswith('v_dot')
        if c.cls == 'mfma' and (vw & c.rd): n = max(n, 2)
        if p.mn.split('_e')[0] in TRANS or p.mn in TRANS:
            if c.cls in ('valu', 'mfma') and (vw & c.rd): n = max(n, 1)
        if c.cls == 'valu':
            if c.dpp and (vw & c.rd): n = max(n, 2)
            if c.mn.startswith('v_permlane') and (vw & c.rd): n = max(n, 2)
            if c.mn.startswith(('v_readlane', 'v_readfirstlane')) and (vw & c.rd): n = max(n, 1)
            if sw & c.rd:
                n = max(n, 4 if c.mn.startswith(('v_readlane', 'v_writelane')) else 2)
            if ('s', 'exec') in sw: n = max(n, 5)
        if c.cls == 'mfma' and ('s', 'exec') in sw: n = max(n, 4)
        if c.cls == 'vmem' and (sw & c.rd): n = max(n, 5)
        if c.cls == 'salu' and (sw & c.rd): n = max(n, 1)
        if isdl and c.cls in ('valu', 'mfma', 'vmem', 'ds') and (vw & (c.rd | c.wr)):
            same = (c.mn == p.mn)
            if same:
                ab = set()
                for o in c.ops[1:3]: ab |= regs_of(o)
                if vw & ab: n = max(n, 3)
            else:
                n = max(n, 3)
        if 'op_sel' in p.text and not p.mn.startswith('v_pk') and c.cls == 'valu' and (vw & (c.rd | c.wr)): n = max(n, 1)
    if p.cls == 'mfma':
        P = p.passes
        if c.cls == 'mfma':
            if vw & c.srcab: n = max(n, {4: 8, 8: 12}[P])
            if vw & c.srcc:
                if not (c.srcc == vw and c.passes == P): n = max(n, {4: 6, 8: 10}[P])
            if (vw & c.wr) and not (vw & c.srcc):
                n = max(n, {4: 8, 8: 12}[P])
        elif c.cls in ('valu', 'vmem', 'ds'):
            if vw & (c.rd | c.wr): n = max(n, {4: 8, 8: 12}[P])
            if c.cls == 'valu' and (p.srcc & c.wr): n = max(n, {4: 3, 8: 7}[P])
    if p.cls == 'salu':
        if ('s', 'm0') in sw and (c.lds_dma or ('s', 'm0') in c.rd and c.cls != 'salu'): n = max(n, 1)
    if p.cls == 'vmem' and p.storedata:
        if p.storedata & c.wr: n = max(n, 2 if c.cls in ('valu', 'mfma') else 1)
    return n

class Asm:
    def __init__(self):
        self.items = []
    def __call__(self, text):
        for line in text.strip().split('\n'):
            line = line.strip()
            if not line or line.startswith(';'):
                continue
            if line.endswith(':') or line.startswith('.'):
                self.items.append(line)
            else:
                self.items.append(Ins(line))
    def label(self, l): self.items.append(l + ':')
    def raw(self, s): self.items.append(s)
    def render(self):
        out = []
        hist = []
        pos = 0
        for it in self.items:
            if isinstance(it, str):
                out.append(it if (it.endswith(':') or it.startswith('.') or it.startswith(';')) else it)
                continue
            need = 0
            for (p, ppos) in hist:
                gap = pos - ppos - 1
                if gap >= 20: continue
                n = need_between(p, it)
                if n - gap > need: need = n - gap
            while need > 0:
                k = min(need, 16)
                out.append('    s_nop %d' % (k - 1))
                pos += k; need -= k
            out.append('    ' + it.text)
            if it.cls == 'nop':
                pos += it.nopn
            else:
                hist.append((it, pos))
                pos += 1
                if len(hist) > 24: hist.pop(0)
        return '\n'.join(out) + '\n'
```

```python
import sys
from asmlib import Asm

NAME = "sequential_preLN__ssm_conv_h3__mixer_channel_mlp__prompt"
WS_UT, WS_XT, WS_HT, WS_HID, WS_ST, WS_CS = 0, 0x200000, 0x400000, 0x600000, 0xD00000, 0xD04000
A_Q, A_K, A_V, A_SK, A_F, A_D, A_BX, A_W1, A_B1, A_W2, A_B2, A_OUT, A_DBG, A_WS = [8 * i for i in range(14)]

def srd(a, d, base, size, off=0):
    if off == 0:
        a(f"s_mov_b32 s{d}, s{base}")
        a(f"s_mov_b32 s{d+1}, s{base+1}")
    else:
        a(f"s_add_u32 s{d}, s{base}, {off}")
        a(f"s_addc_u32 s{d+1}, s{base+1}, 0")
    a(f"s_mov_b32 s{d+2}, {size}")
    a(f"s_mov_b32 s{d+3}, 0x00020000")

def vr(b, n=1):
    return f"v{b}" if n == 1 else f"v[{b}:{b+n-1}]"
def ar(b, n=1):
    return f"a{b}" if n == 1 else f"a[{b}:{b+n-1}]"

def bf16_round(a, dst, src, tmp=None):
    a(f"v_cvt_pk_bf16_f32 v{dst}, v{src}, v{src}")
    a(f"v_lshlrev_b32 v{dst}, 16, v{dst}")

def gen_p1(a):
    a.raw(".p2align 8")
    a.label("p1_kernel")
    a("s_cmp_ge_u32 s2, 256")
    a("s_cbranch_scc1 P1_END")
    a(f"s_load_dwordx8 s[4:11], s[0:1], 0")
    a(f"s_load_dwordx2 s[12:13], s[0:1], {A_W1}")
    a(f"s_load_dwordx2 s[14:15], s[0:1], {A_WS}")
    a("v_lshrrev_b32 v1, 6, v0")
    a("v_readfirstlane_b32 s3, v1")
    a("v_and_b32 v0, 63, v0")
    a("s_mov_b32 s40, 0xffff0000")
    a("s_cmp_eq_u32 s3, 2")
    a("s_cbranch_scc1 P1_STATS")
    a("s_cmp_eq_u32 s3, 3")
    a("s_cbranch_scc1 P1_CS")
    a("s_lshr_b32 s41, s2, 3")
    a("s_and_b32 s42, s2, 7")
    a("s_lshl_b32 s42, s42, 6")
    a("s_lshl_b32 s43, s3, 5")
    a("s_add_u32 s42, s42, s43")
    a("v_and_b32 v1, 3, v0")
    a("v_lshrrev_b32 v2, 2, v0")
    a("s_lshl_b32 s44, s41, 16")
    a("s_lshl_b32 s45, s42, 1")
    a("s_add_u32 s44, s44, s45")
    a("v_lshlrev_b32 v3, 12, v2")
    a("v_lshl_add_u32 v3, v1, 4, v3")
    a("v_add_u32 v3, s44, v3")
    a("v_subrev_u32 v4, 3072, v3")
    a("s_lshl_b32 s45, s42, 3")
    a("v_lshlrev_b32 v5, 6, v1")
    a("v_add_u32 v5, s45, v5")
    a("s_waitcnt lgkmcnt(0)")
    srd(a, 16, 4, 0x200000)
    srd(a, 20, 6, 0x200000)
    srd(a, 24, 8, 0x200000)
    srd(a, 28, 10, 4096)
    srd(a, 32, 14, 0x200000, WS_UT)
    srd(a, 36, 14, 0x200000, WS_XT)
    K0, V0, Q0, S0, T0, KU, U0, VT, PU, PX = 8, 36, 52, 68, 84, 116, 172, 204, 212, 228
    for i in range(4):
        a(f"buffer_load_dwordx4 {vr(S0+4*i,4)}, v5, s[28:31], 0 offen offset:{16*i}")
    for i in range(3):
        a(f"buffer_load_dwordx4 {vr(K0+4*i,4)}, v4, s[20:23], 0 offen offset:{1024*i}")
    for i in range(4):
        a(f"buffer_load_dwordx4 {vr(K0+12+4*i,4)}, v3, s[20:23], 0 offen offset:{1024*i}")
    for i in range(4):
        a(f"buffer_load_dwordx4 {vr(V0+4*i,4)}, v3, s[24:27], 0 offen offset:{1024*i}")
    for i in range(4):
        a(f"buffer_load_dwordx4 {vr(Q0+4*i,4)}, v3, s[16:19], 0 offen offset:{1024*i}")
    a("s_lshl_b32 s46, s3, 13")
    a("v_lshlrev_b32 v6, 1, v1")
    a("v_sub_u32 v7, 15, v2")
    a("v_lshrrev_b32 v244, 1, v7")
    a("v_xor_b32 v244, v244, v6")
    a("v_lshlrev_b32 v244, 4, v244")
    a("v_and_b32 v7, 1, v7")
    a("v_lshl_add_u32 v7, v7, 3, v244")
    a("v_lshl_add_u32 v7, v1, 10, v7")
    a("v_add_u32 v7, s46, v7")
    a("v_lshrrev_b32 v244, 1, v2")
    a("v_xor_b32 v244, v244, v6")
    a("v_lshlrev_b32 v244, 4, v244")
    a("v_and_b32 v245, 1, v2")
    a("v_lshl_add_u32 v245, v245, 3, v244")
    a("v_lshl_add_u32 v245, v1, 10, v245")
    a("v_add_u32 v245, s46, v245")
    a("v_lshrrev_b32 v250, 3, v0")
    a("v_and_b32 v251, 7, v0")
    for it in range(4):
        a(f"v_xor_b32 v244, {2*it}, v251")
        a(f"v_lshlrev_b32 v244, 4, v244")
        a(f"v_lshl_add_u32 v244, v250, 7, v244")
        a(f"v_add_u32 v{246+it}, s46, v244")
    a("v_add_u32 v252, s42, v250")
    a("v_lshlrev_b32 v252, 12, v252")
    a("v_lshl_add_u32 v252, v251, 4, v252")
    a("s_lshl_b32 s47, s41, 7")
    a("s_sub_u32 s48, 3968, s47")
    a("s_mov_b32 s49, 0x05040100")
    a("s_mov_b32 s50, 0x07060302")
    a("s_waitcnt vmcnt(15)")
    for ch in range(8):
        a(f"v_lshlrev_b32 v{T0+0*8+ch}, 16, v{S0+2*ch}")
        a(f"v_and_b32 v{T0+1*8+ch}, s40, v{S0+2*ch}")
        a(f"v_lshlrev_b32 v{T0+2*8+ch}, 16, v{S0+2*ch+1}")
        a(f"v_and_b32 v{T0+3*8+ch}, s40, v{S0+2*ch+1}")
    a("s_waitcnt vmcnt(8)")
    for r in range(7):
        for i in range(4):
            a(f"v_lshlrev_b32 v{KU+8*r+2*i}, 16, v{K0+4*r+i}")
            a(f"v_and_b32 v{KU+8*r+2*i+1}, s40, v{K0+4*r+i}")
    for r in range(4):
        for i in range(4):
            d = vr(U0+8*r+2*i, 2)
            a(f"v_pk_mul_f32 {d}, {vr(KU+8*(r+3)+2*i,2)}, {vr(T0+2*i,2)}")
            for j in range(1, 4):
                a(f"v_pk_fma_f32 {d}, {vr(KU+8*(r+3-j)+2*i,2)}, {vr(T0+8*j+2*i,2)}, {d}")
    a("s_waitcnt vmcnt(4)")
    for r in range(4):
        for i in range(4):
            a(f"v_lshlrev_b32 v{VT+2*i}, 16, v{V0+4*r+i}")
            a(f"v_and_b32 v{VT+2*i+1}, s40, v{V0+4*r+i}")
        for i in range(4):
            d = vr(U0+8*r+2*i, 2)
            a(f"v_pk_mul_f32 {d}, {d}, {vr(VT+2*i,2)}")
    for ch in range(8):
        a(f"v_cvt_pk_bf16_f32 v{PU+2*ch}, v{U0+24+ch}, v{U0+16+ch}")
        a(f"v_cvt_pk_bf16_f32 v{PU+2*ch+1}, v{U0+8+ch}, v{U0+ch}")
    for ch in range(8):
        a(f"ds_write_b64 v7, {vr(PU+2*ch,2)} offset:{128*ch}")
    a("s_waitcnt vmcnt(0)")
    for i in range(4):
        a(f"v_perm_b32 v{PX+4*i+0}, v{Q0+4+i}, v{Q0+i}, s49")
        a(f"v_perm_b32 v{PX+4*i+1}, v{Q0+12+i}, v{Q0+8+i}, s49")
        a(f"v_perm_b32 v{PX+4*i+2}, v{Q0+4+i}, v{Q0+i}, s50")
        a(f"v_perm_b32 v{PX+4*i+3}, v{Q0+12+i}, v{Q0+8+i}, s50")
    for ch in range(8):
        a(f"ds_write_b64 v245, {vr(PX+2*ch,2)} offset:{4096+128*ch}")
    a("s_waitcnt lgkmcnt(0)")
    for it in range(4):
        a(f"ds_read_b128 {vr(8+4*it,4)}, v{246+it} offset:{1024*it}")
    for it in range(4):
        a(f"ds_read_b128 {vr(24+4*it,4)}, v{246+it} offset:{4096+1024*it}")
    for it in range(4):
        a(f"s_waitcnt lgkmcnt({7-it})")
        a(f"buffer_store_dwordx4 {vr(8+4*it,4)}, v252, s[32:35], s48 offen")
        a(f"s_add_u32 s48, s48, 32768")
    for it in range(4):
        a(f"s_waitcnt lgkmcnt({3-it})")
        a(f"buffer_store_dwordx4 {vr(24+4*it,4)}, v252, s[36:39], s47 offen")
        a(f"s_add_u32 s47, s47, 32768")
    a("s_endpgm")
    a.label("P1_STATS")
    a("v_lshrrev_b32 v1, 3, v0")
    a("v_and_b32 v2, 7, v0")
    a("s_lshl_b32 s41, s2, 3")
    a("v_add_u32 v1, s41, v1")
    a("v_lshlrev_b32 v3, 10, v1")
    a("v_lshl_add_u32 v3, v2, 4, v3")
    a("s_waitcnt lgkmcnt(0)")
    srd(a, 16, 4, 0x200000)
    srd(a, 20, 14, 16384, WS_ST)
    for i in range(8):
        a(f"buffer_load_dwordx4 {vr(8+4*i,4)}, v3, s[16:19], 0 offen offset:{128*i}")
    X = 40
    for i in range(8):
        a(f"s_waitcnt vmcnt({7-i})")
        for j in range(4):
            a(f"v_lshlrev_b32 v{X+8*i+2*j}, 16, v{8+4*i+j}")
            a(f"v_and_b32 v{X+8*i+2*j+1}, s40, v{8+4*i+j}")
    a(f"v_pk_add_f32 v[4:5], {vr(X,2)}, {vr(X+2,2)}")
    a(f"v_pk_add_f32 v[6:7], {vr(X+4,2)}, {vr(X+6,2)}")
    for i in range(4, 32, 2):
        a(f"v_pk_add_f32 v[4:5], v[4:5], {vr(X+2*i,2)}")
        a(f"v_pk_add_f32 v[6:7], v[6:7], {vr(X+2*i+2,2)}")
    a("v_pk_add_f32 v[4:5], v[4:5], v[6:7]")
    a("v_add_f32 v4, v4, v5")
    def red8(r):
        a(f"v_add_f32_dpp v{r}, v{r}, v{r} quad_perm:[1,0,3,2] row_mask:0xf bank_mask:0xf")
        a(f"v_add_f32_dpp v{r}, v{r}, v{r} quad_perm:[2,3,0,1] row_mask:0xf bank_mask:0xf")
        a(f"v_add_f32_dpp v{r}, v{r}, v{r} row_half_mirror row_mask:0xf bank_mask:0xf")
    red8(4)
    a("v_mul_f32 v4, 0x3b000000, v4")
    a("v_sub_f32 v8, 0, v4")
    a("v_mov_b32 v9, v8")
    a("v_mov_b32 v6, 0")
    a("v_mov_b32 v7, 0")
    a("v_mov_b32 v10, 0")
    a("v_mov_b32 v11, 0")
    for i in range(32):
        a(f"v_pk_add_f32 {vr(X+2*i,2)}, {vr(X+2*i,2)}, v[8:9]")
    for i in range(0, 32, 2):
        a(f"v_pk_fma_f32 v[6:7], {vr(X+2*i,2)}, {vr(X+2*i,2)}, v[6:7]")
        a(f"v_pk_fma_f32 v[10:11], {vr(X+2*i+2,2)}, {vr(X+2*i+2,2)}, v[10:11]")
    a("v_pk_add_f32 v[6:7], v[6:7], v[10:11]")
    a("v_add_f32 v6, v6, v7")
    red8(6)
    a("v_mul_f32 v6, 0x3b000000, v6")
    bf16_round(a, 4, 4)
    bf16_round(a, 6, 6)
    a("v_add_f32 v6, 0x3727c5ac, v6")
    bf16_round(a, 6, 6)
    a("v_sqrt_f32 v6, v6")
    bf16_round(a, 6, 6)
    a("v_rcp_f32 v6, v6")
    a("v_lshlrev_b32 v1, 2, v1")
    a("v_cmp_eq_u32 vcc, 0, v2")
    a("s_and_saveexec_b64 s[44:45], vcc")
    a("buffer_store_dword v4, v1, s[20:23], 0 offen")
    a("s_mov_b32 s46, 8192")
    a("buffer_store_dword v6, v1, s[20:23], s46 offen")
    a("s_endpgm")
    a.label("P1_CS")
    a("s_cmp_ge_u32 s2, 224")
    a("s_cbranch_scc1 P1_END")
    a("s_and_b32 s41, s2, 7")
    a("s_mul_i32 s41, s41, 28")
    a("s_lshr_b32 s42, s2, 3")
    a("s_add_u32 s41, s41, s42")
    a("s_lshl_b32 s42, s41, 4")
    a("v_mul_u32_u24 v1, 3584, v0")
    a("v_add_u32 v1, s42, v1")
    a("s_waitcnt lgkmcnt(0)")
    srd(a, 16, 12, 512*3584)
    srd(a, 20, 14, 7168, WS_CS)
    a("s_mov_b32 s43, 0")
    for i in range(8):
        a(f"buffer_load_dwordx4 {vr(8+4*i,4)}, v1, s[16:19], s43 offen")
        a(f"s_add_u32 s43, s43, {64*3584}")
    P = 40; T = 48
    for i in range(8):
        a(f"s_waitcnt vmcnt({7-i})")
        dst = P if i == 0 else T
        for j in range(4):
            a(f"v_lshlrev_b32 v{dst+2*j}, 16, v{8+4*i+j}")
            a(f"v_and_b32 v{dst+2*j+1}, s40, v{8+4*i+j}")
        if i:
            for j in range(4):
                a(f"v_pk_add_f32 {vr(P+2*j,2)}, {vr(P+2*j,2)}, {vr(T+2*j,2)}")
    for j in range(4):
        a(f"v_permlane32_swap_b32 v{P+2*j}, v{P+2*j+1}")
    for j in range(4):
        a(f"v_add_f32 v{P+2*j}, v{P+2*j}, v{P+2*j+1}")
    a(f"v_permlane16_swap_b32 v{P}, v{P+2}")
    a(f"v_permlane16_swap_b32 v{P+4}, v{P+6}")
    a(f"v_add_f32 v{P}, v{P}, v{P+2}")
    a(f"v_add_f32 v{P+4}, v{P+4}, v{P+6}")
    for r in (P, P+4):
        a(f"v_add_f32_dpp v{r}, v{r}, v{r} quad_perm:[1,0,3,2] row_mask:0xf bank_mask:0xf")
        a(f"v_add_f32_dpp v{r}, v{r}, v{r} quad_perm:[2,3,0,1] row_mask:0xf bank_mask:0xf")
        a(f"v_add_f32_dpp v{r}, v{r}, v{r} row_half_mirror row_mask:0xf bank_mask:0xf")
        a(f"v_add_f32_dpp v{r}, v{r}, v{r} row_mirror row_mask:0xf bank_mask:0xf")
    a("v_lshrrev_b32 v2, 4, v0")
    a("v_and_b32 v3, 1, v2")
    a("v_lshlrev_b32 v3, 1, v3")
    a("v_lshrrev_b32 v2, 1, v2")
    a("v_or_b32 v2, v2, v3")
    a("v_lshlrev_b32 v2, 2, v2")
    a("s_lshl_b32 s42, s41, 5")
    a("v_add_u32 v2, s42, v2")
    a("v_and_b32 v3, 15, v0")
    a("v_cmp_eq_u32 vcc, 0, v3")
    a("s_and_saveexec_b64 s[44:45], vcc")
    a(f"buffer_store_dword v{P}, v2, s[20:23], 0 offen")
    a(f"buffer_store_dword v{P+4}, v2, s[20:23], 0 offen offset:16")
    a.label("P1_END")
    a("s_endpgm")

def gen_p2(a):
    a.raw(".p2align 8")
    a.label("p2_kernel")
    a("s_cmp_ge_u32 s2, 256")
    a("s_cbranch_scc1 P2_END")
    a(f"s_load_dwordx4 s[4:7], s[0:1], {A_F}")
    a(f"s_load_dwordx2 s[8:9], s[0:1], {A_WS}")
    a("v_lshrrev_b32 v1, 6, v0")
    a("v_readfirstlane_b32 s3, v1")
    a("v_and_b32 v0, 63, v0")
    a("s_lshr_b32 s40, s3, 1")
    a("s_and_b32 s41, s3, 1")
    a("s_lshl_b32 s42, s2, 1")
    a("s_add_u32 s42, s42, s40")
    a("s_lshl_b32 s43, s42, 12")
    a("s_mul_i32 s44, s40, 4608")
    a("s_mov_b32 s45, 0xffff0000")
    a("v_and_b32 v1, 15, v0")
    a("v_lshrrev_b32 v2, 4, v0")
    a("s_lshl_b32 s46, s41, 8")
    a("v_lshlrev_b32 v3, 1, v1")
    a("v_lshl_add_u32 v3, v2, 4, v3")
    a("v_add_u32 v3, s46, v3")
    a("v_add_u32 v4, 34, v3")
    a("v_subrev_u32 v3, 30, v3")
    a("v_lshlrev_b32 v5, 4, v0")
    a("s_lshl_b32 s47, s2, 2")
    a("s_waitcnt lgkmcnt(0)")
    a("s_load_dword s48, s[6:7], s47")
    a("s_add_u32 s12, s4, s43"); a("s_addc_u32 s13, s5, 0"); a("s_mov_b32 s14, 4096"); a("s_mov_b32 s15, 0x00020000")
    a("s_add_u32 s16, s8, s43"); a("s_addc_u32 s17, s9, 0"); a("s_mov_b32 s18, 4096"); a("s_mov_b32 s19, 0x00020000")
    a(f"s_add_u32 s20, s16, {WS_XT}"); a("s_addc_u32 s21, s17, 0"); a("s_mov_b32 s22, 4096"); a("s_mov_b32 s23, 0x00020000")
    a(f"s_add_u32 s24, s16, {WS_HT}"); a("s_addc_u32 s25, s17, 0"); a("s_mov_b32 s26, 4096"); a("s_mov_b32 s27, 0x00020000")
    srd(a, 28, 8, 16384, WS_ST)
    a("s_lshl_b32 s49, s41, 11")
    a("s_add_u32 s50, s44, s49")
    a("s_mov_b32 m0, s50")
    a("buffer_load_dwordx4 v5, s[16:19], s49 offen lds")
    a("buffer_load_dwordx4 v5, s[16:19], s49 offen offset:1024 lds")
    a("v_mov_b32 v6, 0")
    a("v_mov_b32 v7, 0")
    a("v_lshlrev_b32 v8, 3, v0")
    a("v_add_u32 v8, s44, v8")
    a("ds_write_b64 v8, v[6:7] offset:4096")
    for j in range(8):
        a(f"v_add_u32 v{18+j}, {2*j}, v3")
    for j in range(8):
        a(f"buffer_load_ushort v{10+j}, v{18+j}, s[12:15], 0 offen")
    for ri in range(4):
        for aa in range(8):
            if ri == 0 and aa == 0: continue
            a(f"buffer_load_dwordx4 {ar((ri*8+aa)*4,4)}, v4, s[12:15], 0 offen offset:{64*(8*aa+ri-1)}")
    a("v_lshlrev_b32 v26, 4, v1")
    a("v_lshl_add_u32 v26, v2, 2, v26")
    a("s_lshl_b32 s51, s41, 10")
    a("v_add_u32 v26, s51, v26")
    a("v_lshlrev_b32 v27, 1, v26")
    a("v_lshlrev_b32 v28, 2, v26")
    XR, MR, RR = 32, 40, 56
    for i in range(4):
        a(f"buffer_load_dwordx2 {vr(XR+2*i,2)}, v27, s[20:23], 0 offen offset:{512*i}")
    a("s_mov_b32 s52, 8192")
    for i in range(4):
        a(f"buffer_load_dwordx4 {vr(MR+4*i,4)}, v28, s[28:31], 0 offen offset:{1024*i}")
    for i in range(4):
        a(f"buffer_load_dwordx4 {vr(RR+4*i,4)}, v28, s[28:31], s52 offen offset:{1024*i}")
    a("v_lshlrev_b32 v29, 1, v1")
    a("v_sub_u32 v29, v2, v29")
    a("v_add_u32 v29, 30, v29")
    a("v_lshlrev_b32 v29, 4, v29")
    a("s_add_u32 s53, s44, s46")
    a("v_add_u32 v29, s53, v29")
    a("s_add_u32 s53, s44, 2552")
    a("v_sub_u32 v30, s53, v27")
    a("s_lshl_b32 s54, s3, 12")
    a("s_add_u32 s54, s54, 9216")
    a("s_xor_b32 s55, s3, 1")
    a("s_lshl_b32 s55, s55, 12")
    a("s_add_u32 s55, s55, 9216")
    a("v_add_u32 v31, s54, v5")
    a("v_add_u32 v9, s55, v5")
    a("s_waitcnt vmcnt(51) lgkmcnt(0)")
    a("s_barrier")
    B0, B1, ACC = 72, 104, 136
    UD, QN, XF = 168, 184, 200
    UR = 216
    def readB(buf, ri):
        for b in range(8):
            a(f"ds_read_b128 {vr(buf+4*b,4)}, v29 offset:{64*ri+512*(7-b)}")
    readB(B0, 0)
    for i in range(4):
        a(f"ds_read_b64 {vr(UR+2*i,2)}, v30 offset:{512*(3-i)}")
    a("s_waitcnt vmcnt(43)")
    for j in range(4):
        a(f"v_lshl_or_b32 v{10+2*j}, v{11+2*j}, 16, v{10+2*j}")
        a(f"v_accvgpr_write_b32 a{j}, v{10+2*j}")
    for ri in range(4):
        cur = B0 if ri % 2 == 0 else B1
        nxt = B1 if ri % 2 == 0 else B0
        a(f"s_waitcnt vmcnt({(3-ri)*8+12}) lgkmcnt(0)")
        if ri < 3: readB(nxt, ri+1)
        for b in range(8):
            for aa in range(8 - b):
                t = aa + b
                first = (ri == 0 and b == 0)
                c = "0" if first else vr(ACC+4*t, 4)
                a(f"v_mfma_f32_16x16x32_bf16 {vr(ACC+4*t,4)}, {ar((ri*8+aa)*4,4)}, {vr(cur+4*b,4)}, {c}")
    a("s_waitcnt vmcnt(0)")
    a("s_cmp_eq_u32 s40, 0")
    a("s_cselect_b32 s56, 16, 0")
    a("s_lshl_b32 s48, s48, s56")
    a("s_and_b32 s48, s48, s45")
    for i in range(4):
        a(f"v_lshlrev_b32 v{XF+4*i}, 16, v{XR+2*i}")
        a(f"v_and_b32 v{XF+4*i+1}, s45, v{XR+2*i}")
        a(f"v_lshlrev_b32 v{XF+4*i+2}, 16, v{XR+2*i+1}")
        a(f"v_and_b32 v{XF+4*i+3}, s45, v{XR+2*i+1}")
        a(f"v_and_b32 v{UD+4*i}, s45, v{UR+2*i+1}")
        a(f"v_lshlrev_b32 v{UD+4*i+1}, 16, v{UR+2*i+1}")
        a(f"v_and_b32 v{UD+4*i+2}, s45, v{UR+2*i}")
        a(f"v_lshlrev_b32 v{UD+4*i+3}, 16, v{UR+2*i}")
    for k in range(16):
        a(f"v_sub_f32 v{QN+k}, v{XF+k}, v{MR+k}")
        a(f"v_mul_f32 v{QN+k}, v{QN+k}, v{RR+k}")
        a(f"v_mul_f32 v{UD+k}, s48, v{UD+k}")
    R = 224
    a("s_cmp_eq_u32 s41, 0")
    a("s_cbranch_scc0 P2_ODD")
    for par in range(2):
        if par == 1: a.label("P2_ODD")
        send = ACC + 16 * (1 - par); keep = ACC + 16 * par
        a("s_nop 7")
        for i in range(4):
            a(f"ds_write_b128 v31, {vr(send+4*i,4)} offset:{1024*i}")
        for k in range(16):
            a(f"v_add_f32 v{UD+k}, v{UD+k}, v{keep+k}")
        a("s_waitcnt lgkmcnt(0)")
        a("s_barrier")
        if par == 0: a("s_branch P2_JOIN")
    a.label("P2_JOIN")
    for i in range(4):
        a(f"ds_read_b128 {vr(R+4*i,4)}, v9 offset:{1024*i}")
    for i in range(4):
        a(f"s_waitcnt lgkmcnt({3-i})")
        for k in range(4):
            kk = 4*i+k
            a(f"v_add_f32 v{UD+kk}, v{UD+kk}, v{R+kk}")
            a(f"v_fma_f32 v{UD+kk}, v{QN+kk}, v{UD+kk}, v{XF+kk}")
        a(f"v_cvt_pk_bf16_f32 v{XR+2*i}, v{UD+4*i}, v{UD+4*i+1}")
        a(f"v_cvt_pk_bf16_f32 v{XR+2*i+1}, v{UD+4*i+2}, v{UD+4*i+3}")
        a(f"buffer_store_dwordx2 {vr(XR+2*i,2)}, v27, s[24:27], 0 offen offset:{512*i}")
    a.label("P2_END")
    a("s_endpgm")

def gen_p3(a):
    STG = 30720
    a.raw(".p2align 8")
    a.label("p3_kernel")
    a("s_cmp_ge_u32 s2, 256")
    a("s_cbranch_scc1 P3_END")
    a(f"s_load_dwordx4 s[4:7], s[0:1], {A_W1}")
    a(f"s_load_dwordx2 s[8:9], s[0:1], {A_WS}")
    a("v_lshrrev_b32 v1, 6, v0")
    a("v_readfirstlane_b32 s3, v1")
    a("v_and_b32 v0, 63, v0")
    a("s_and_b32 s40, s2, 7")
    a("s_lshr_b32 s41, s2, 3")
    a("s_lshr_b32 s42, s40, 1")
    a("s_lshl_b32 s42, s42, 2")
    a("s_and_b32 s43, s41, 3")
    a("s_add_u32 s42, s42, s43")
    a("s_and_b32 s43, s40, 1")
    a("s_lshl_b32 s43, s43, 3")
    a("s_lshr_b32 s44, s41, 2")
    a("s_add_u32 s43, s43, s44")
    a("s_mov_b32 s45, 0xffff0000")
    a("v_and_b32 v1, 15, v0")
    a("v_lshrrev_b32 v2, 4, v0")
    a("v_lshrrev_b32 v5, 1, v1")
    a("v_and_b32 v6, 1, v1")
    a("v_xor_b32 v7, v5, v2")
    a("v_lshlrev_b32 v7, 5, v7")
    a("v_lshl_add_u32 v7, v6, 4, v7")
    a("v_lshl_add_u32 v3, v2, 12, v7")
    a("v_xor_b32 v4, 128, v3")
    a("s_lshl_b32 s46, s3, 16")
    a("s_lshl_b32 s47, s42, 8")
    a("s_add_u32 s46, s46, s47")
    for jj in range(4):
        if jj < 3:
            a(f"s_add_u32 s48, s3, {4*jj}")
        else:
            a("s_cmp_lt_u32 s3, 2")
            a("s_cselect_b32 s48, 12, 10")
            a("s_add_u32 s48, s48, s3")
        a(f"s_lshl_b32 s{52+jj}, s48, 10")
        a("s_lshl_b32 s48, s48, 6")
        a("v_add_u32 v5, s48, v0")
        a("v_mul_u32_u24 v6, 4682, v5")
        a("v_lshrrev_b32 v6, 16, v6")
        a("v_mul_u32_u24 v7, 14, v6")
        a("v_sub_u32 v7, v5, v7")
        a("v_mul_u32_u24 v6, 3584, v6")
        a(f"v_lshl_add_u32 v{8+jj}, v7, 4, v6")
    a("s_mul_i32 s49, s43, 224")
    a("s_waitcnt lgkmcnt(0)")
    srd(a, 12, 4, 512*3584)
    srd(a, 16, 8, 0x200000, WS_HT)
    srd(a, 20, 8, 0x700000, WS_HID)
    srd(a, 24, 8, 7168, WS_CS)
    srd(a, 28, 6, 3584)
    a("s_lshl_b32 s50, s3, 12")
    def issue_stage(st):
        slot = (st % 5) * STG
        for i in range(4):
            a(f"s_add_u32 s51, s50, {slot + 1024*i}")
            a("s_mov_b32 m0, s51")
            a(f"s_add_u32 s56, s46, {st*64*4096 + i*16384}")
            a(f"buffer_load_dwordx4 v{3 + (i & 1)}, s[16:19], s56 offen lds")
        a(f"s_add_u32 s56, s49, {st*64*3584}")
        for jj in range(4):
            a(f"s_add_u32 s51, s{52+jj}, {slot + 16384}")
            a("s_mov_b32 m0, s51")
            a(f"buffer_load_dwordx4 v{8+jj}, s[12:15], s56 offen lds")
    for st in range(4):
        issue_stage(st)
    CS, BB = 160, 188
    BU = 204
    a("s_mul_i32 s57, s43, 112")
    a("v_lshlrev_b32 v12, 2, v2")
    a("v_add_u32 v12, s57, v12")
    a("v_lshlrev_b32 v13, 2, v12")
    a("v_lshlrev_b32 v14, 1, v12")
    for t in range(7):
        a(f"buffer_load_dwordx4 {vr(CS+4*t,4)}, v13, s[24:27], 0 offen offset:{64*t}")
    for t in range(7):
        a(f"buffer_load_dwordx2 {vr(BB+2*t,2)}, v14, s[28:31], 0 offen offset:{32*t}")
    NEXTRA = 14
    a("v_lshrrev_b32 v5, 2, v1")
    a("v_lshl_add_u32 v5, v2, 2, v5")
    a("v_and_b32 v6, 7, v5")
    a("s_lshl_b32 s57, s3, 1")
    a("v_xor_b32 v6, s57, v6")
    a("v_and_b32 v7, 3, v0")
    a("v_lshlrev_b32 v15, 8, v5")
    a("v_lshl_add_u32 v15, v7, 3, v15")
    a("v_lshl_add_u32 v15, v6, 5, v15")
    a("v_xor_b32 v16, 32, v15")
    a("v_mul_u32_u24 v17, 224, v5")
    a("v_lshl_add_u32 v17, v7, 3, v17")
    a("v_add_u32 v17, 16384, v17")
    for j in range(4):
        a(f"v_mov_b32 v{20+j}, 0x3f803f80")
    F0, F1 = 24, 60
    ACC = 96
    GR, SM = 232, 240
    def read_frags(buf, st, ks):
        base = (st % 5) * STG
        for tk in range(2):
            for rho in range(2):
                off = base + (32*ks + 16*rho) * 256
                a(f"ds_read_b64_tr_b16 {vr(buf+4*tk+2*rho,2)}, v{15+tk} offset:{off}" if off < 65536 else
                  f"ds_read_b64_tr_b16 {vr(buf+4*tk+2*rho,2)}, v{152+tk + (2 if off >= 131072 else 0)} offset:{off - (131072 if off >= 131072 else 65536)}")
        for t in range(7):
            for rho in range(2):
                off = base + (32*ks + 16*rho) * 224 + t*32
                if off < 65536 - 0: reg, o = 17, off
                elif off < 131072: reg, o = 156, off - 65536
                else: reg, o = 157, off - 131072
                a(f"ds_read_b64_tr_b16 {vr(buf+8+4*t+2*rho,2)}, v{reg} offset:{o}")
    a("v_add_u32 v152, 0x10000, v15"); a("v_add_u32 v153, 0x10000, v16")
    a("v_add_u32 v154, 0x20000, v15"); a("v_add_u32 v155, 0x20000, v16")
    a("v_add_u32 v156, 0x10000, v17"); a("v_add_u32 v157, 0x20000, v17")
    def mfmas(buf, first):
        for tk in range(2):
            hb = vr(buf+4*tk, 4)
            for t in range(7):
                d = vr(ACC + 4*(tk*7+t), 4)
                a(f"v_mfma_f32_16x16x32_bf16 {d}, {vr(buf+8+4*t,4)}, {hb}, {'0' if first else d}")
            d = vr(GR+4*tk, 4)
            a(f"v_mfma_f32_16x16x32_bf16 {d}, {hb}, {hb}, {'0' if first else d}")
            d = vr(SM+4*tk, 4)
            a(f"v_mfma_f32_16x16x32_bf16 {d}, v[20:23], {hb}, {'0' if first else d}")
    a(f"s_waitcnt vmcnt({24+NEXTRA})")
    a("s_barrier")
    read_frags(F0, 0, 0)
    for st in range(8):
        a("s_waitcnt lgkmcnt(0)")
        read_frags(F1, st, 1)
        mfmas(F0, st == 0)
        if st < 7:
            nxt = st + 1
            if nxt <= 3:
                rem = (3 - nxt) * 8 + NEXTRA + 8 * max(0, min(st + 3, 7) - 3)
            else:
                rem = 8 * (min(st + 3, 7) - nxt)
            a(f"s_waitcnt vmcnt({rem}) lgkmcnt(0)")
            a("s_barrier")
            if st + 4 <= 7: issue_stage(st + 4)
            read_frags(F0, st + 1, 0)
        else:
            a("s_waitcnt lgkmcnt(0)")
        mfmas(F1, False)
    a("s_waitcnt vmcnt(0)")
    for t in range(7):
        a(f"v_lshlrev_b32 v{BU+4*t}, 16, v{BB+2*t}")
        a(f"v_and_b32 v{BU+4*t+1}, s45, v{BB+2*t}")
        a(f"v_lshlrev_b32 v{BU+4*t+2}, 16, v{BB+2*t+1}")
        a(f"v_and_b32 v{BU+4*t+3}, s45, v{BB+2*t+1}")
    a("v_and_b32 v5, 3, v1")
    a("v_lshrrev_b32 v6, 2, v1")
    a("v_lshl_add_u32 v6, v6, 4, v1")
    a("v_lshlrev_b32 v6, 2, v6")
    RS, TM = 24, 28
    for tk in range(2):
        g = GR + 4*tk
        a("v_cmp_eq_u32 vcc, 1, v5")
        a(f"v_cndmask_b32 v7, v{g}, v{g+1}, vcc")
        a("v_cmp_eq_u32 vcc, 2, v5")
        a(f"v_cndmask_b32 v7, v7, v{g+2}, vcc")
        a("v_cmp_eq_u32 vcc, 3, v5")
        a(f"v_cndmask_b32 v7, v7, v{g+3}, vcc")
        a(f"ds_bpermute_b32 v{32+tk}, v6, v7")
    a("s_waitcnt lgkmcnt(0)")
    for tk in range(2):
        m, q = 34, 32 + tk
        a(f"v_mul_f32 v{m}, 0x3b000000, v{SM+4*tk}")
        a(f"v_mul_f32 v{q}, 0x3b000000, v{q}")
        a(f"v_fma_f32 v{q}, -v{m}, v{m}, v{q}")
        a(f"v_max_f32 v{q}, 0, v{q}")
        bf16_round(a, 35, q)
        a("v_add_f32 v35, 0x3727c5ac, v35")
        bf16_round(a, 35, 35)
        a("v_sqrt_f32 v35, v35")
        bf16_round(a, 35, 35)
        a("v_rcp_f32 v35, v35")
        a(f"v_mul_f32 v36, v{q}, v35")
        a("v_mul_f32 v36, v36, v35")
        bf16_round(a, 36, 36)
        a("v_add_f32 v36, 0x3727c5ac, v36")
        bf16_round(a, 36, 36)
        a("v_sqrt_f32 v36, v36")
        bf16_round(a, 36, 36)
        a("v_rcp_f32 v36, v36")
        a(f"v_mul_f32 v{RS+2*tk}, v35, v36")
        a(f"v_mov_b32 v{RS+2*tk+1}, v{RS+2*tk}")
        a(f"v_mul_f32 v{TM+2*tk}, v{RS+2*tk}, v{m}")
        a(f"v_sub_f32 v{TM+2*tk}, 0, v{TM+2*tk}")
        a(f"v_mov_b32 v{TM+2*tk+1}, v{TM+2*tk}")
    import math, struct
    c0 = -2.0 * math.sqrt(2.0 / math.pi) * math.log2(math.e)
    c1 = c0 * 0.044715
    f2u = lambda x: struct.unpack('<I', struct.pack('<f', x))[0]
    a(f"v_mov_b32 v40, {hex(f2u(c0))}"); a("v_mov_b32 v41, v40")
    a(f"v_mov_b32 v42, {hex(f2u(c1))}"); a("v_mov_b32 v43, v42")
    a("v_mov_b32 v44, 1.0"); a("v_mov_b32 v45, 1.0")
    a("s_lshl_b32 s57, s42, 3")
    a("s_lshl_b32 s58, s3, 1")
    a("s_add_u32 s57, s57, s58")
    a("s_mul_i32 s57, s57, 57344")
    a("s_lshr_b32 s58, s43, 1")
    a("s_mul_i32 s58, s58, 7168")
    a("s_add_u32 s57, s57, s58")
    a("s_and_b32 s58, s43, 1")
    a("s_mul_i32 s59, s58, 3072")
    a("s_add_u32 s59, s59, s57")
    a("s_lshl_b32 s58, s58, 3")
    a("s_add_u32 s60, s57, s58")
    a("s_add_u32 s60, s60, 6144")
    a("v_lshlrev_b32 v46, 4, v0")
    T1, T2, PK = 48, 52, 56
    for tk in range(2):
        for t in range(7):
            acc = ACC + 4*(tk*7+t)
            for h in range(2):
                x = vr(acc+2*h, 2)
                t1 = vr(T1+2*h, 2)
                a(f"v_pk_fma_f32 {t1}, {vr(CS+4*t+2*h,2)}, {vr(TM+2*tk,2)}, {vr(BU+4*t+2*h,2)}")
                a(f"v_pk_fma_f32 {x}, {x}, {vr(RS+2*tk,2)}, {t1}")
                a(f"v_pk_mul_f32 {t1}, {x}, {x}")
                a(f"v_pk_fma_f32 {t1}, {t1}, v[42:43], v[40:41]")
                a(f"v_pk_mul_f32 {t1}, {t1}, {x}")
            for k in range(4):
                a(f"v_exp_f32 v{T1+k}, v{T1+k}")
            for h in range(2):
                a(f"v_pk_add_f32 {vr(T1+2*h,2)}, {vr(T1+2*h,2)}, v[44:45]")
            for k in range(4):
                a(f"v_rcp_f32 v{T1+k}, v{T1+k}")
            for h in range(2):
                a(f"v_pk_mul_f32 {vr(acc+2*h,2)}, {vr(acc+2*h,2)}, {vr(T1+2*h,2)}")
            pk = PK + 4*((tk*4 + t//2) % 4) + 2*(t & 1)
            a(f"v_cvt_pk_bf16_f32 v{pk}, v{acc}, v{acc+1}")
            a(f"v_cvt_pk_bf16_f32 v{pk+1}, v{acc+2}, v{acc+3}")
            if t & 1:
                a(f"buffer_store_dwordx4 {vr(pk-2,4)}, v46, s[20:23], s59 offen offset:{1024*(t//2)}")
            elif t == 6:
                a(f"buffer_store_dwordx2 {vr(pk,2)}, v46, s[20:23], s60 offen")
        if tk == 0:
            a("s_add_u32 s59, s59, 57344")
            a("s_add_u32 s60, s60, 57344")
    a.label("P3_END")
    a("s_endpgm")

def gen_p4(a):
    a.raw(".p2align 8")
    a.label("p4_kernel")
    a("s_cmp_ge_u32 s2, 256")
    a("s_cbranch_scc1 P4_END")
    a(f"s_load_dwordx4 s[4:7], s[0:1], {A_W2}")
    a(f"s_load_dwordx2 s[8:9], s[0:1], {A_WS}")
    a(f"s_load_dwordx2 s[10:11], s[0:1], {A_OUT}")
    a("v_lshrrev_b32 v1, 6, v0")
    a("v_readfirstlane_b32 s3, v1")
    a("v_and_b32 v0, 63, v0")
    a("s_and_b32 s40, s2, 7")
    a("s_lshr_b32 s41, s2, 3")
    a("s_lshr_b32 s42, s40, 1")
    a("s_lshl_b32 s42, s42, 3")
    a("s_and_b32 s43, s41, 7")
    a("s_add_u32 s42, s42, s43")
    a("s_and_b32 s43, s40, 1")
    a("s_lshl_b32 s43, s43, 2")
    a("s_lshr_b32 s44, s41, 3")
    a("s_add_u32 s43, s43, s44")
    a("s_mov_b32 s45, 0xffff0000")
    a("v_and_b32 v1, 15, v0")
    a("v_lshrrev_b32 v2, 4, v0")
    a("v_lshlrev_b32 v3, 4, v0")
    a("v_and_b32 v4, 7, v0")
    a("v_lshrrev_b32 v5, 1, v4")
    a("v_xor_b32 v5, v5, v2")
    a("v_lshlrev_b32 v5, 5, v5")
    a("v_and_b32 v4, 1, v4")
    a("v_lshl_add_u32 v5, v4, 4, v5")
    a("v_lshrrev_b32 v4, 3, v0")
    a("v_lshl_add_u32 v4, v4, 10, v5")
    a("s_mul_i32 s46, s3, 448*1024")
    a("s_lshl_b32 s47, s43, 7")
    a("s_add_u32 s46, s46, s47")
    a("s_mul_i32 s47, s42, 4*57344")
    a("s_mul_i32 s48, s3, 14336")
    a("s_add_u32 s47, s47, s48")
    a("s_lshl_b32 s49, s3, 15")
    a("s_waitcnt lgkmcnt(0)")
    srd(a, 12, 4, 1792*1024)
    srd(a, 16, 8, 0x700000, WS_HID)
    srd(a, 20, 8, 0x200000, WS_HT)
    srd(a, 24, 10, 0x200000)
    srd(a, 28, 6, 1024)
    for j in range(4):
        a(f"s_add_u32 s{52+j}, s47, {57344*j}")
    HR = 96
    def frow(kbl, half):
        pr, j = divmod(kbl, 7)
        if j < 3: return pr*224 + 32*j + 16*half
        if j < 6: return pr*224 + 112 + 32*(j-3) + 16*half
        return pr*224 + 112*half + 96
    def issue(kbl):
        slot = kbl % 8
        for j in range(4):
            if kbl < 4:
                a(f"buffer_load_dwordx4 {vr(HR+16*slot+4*j,4)}, v3, s[16:19], s{52+j} offen offset:{1024*kbl}")
            else:
                a(f"s_add_u32 s56, s{52+j}, {1024*kbl}")
                a(f"buffer_load_dwordx4 {vr(HR+16*slot+4*j,4)}, v3, s[16:19], s56 offen")
        for i in range(4):
            fr = frow(kbl, i >> 1) + 8*(i & 1)
            a(f"s_add_u32 s51, s49, {slot*4096 + 1024*i}")
            a("s_mov_b32 m0, s51")
            a(f"s_add_u32 s56, s46, {fr*1024}")
            a(f"buffer_load_dwordx4 v4, s[12:15], s56 offen lds")
    RES, B2 = 224, 240
    a("s_lshl_b32 s57, s42, 6")
    a("s_lshl_b32 s58, s3, 4")
    a("s_add_u32 s57, s57, s58")
    a("v_add_u32 v6, s57, v1")
    a("s_lshl_b32 s58, s43, 6")
    a("v_lshlrev_b32 v7, 2, v2")
    a("v_add_u32 v7, s58, v7")
    a("v_lshlrev_b32 v8, 12, v7")
    a("v_lshl_add_u32 v8, v6, 1, v8")
    a("v_lshlrev_b32 v9, 1, v7")
    a("v_lshlrev_b32 v10, 10, v6")
    a("v_add_u32 v10, v10, v9")
    DEPTH = 5
    for kbl in range(DEPTH):
        issue(kbl)
    for mt in range(4):
        for k in range(4):
            a(f"s_mov_b32 s56, {(16*mt+k)*4096}")
            a(f"buffer_load_short_d16_hi v{RES+4*mt+k}, v8, s[20:23], s56 offen")
    for mt in range(4):
        a(f"buffer_load_dwordx2 {vr(B2+2*mt,2)}, v9, s[28:31], 0 offen offset:{32*mt}")
    NX = 20
    a("v_lshrrev_b32 v5, 2, v1")
    a("v_lshl_add_u32 v5, v2, 2, v5")
    a("v_lshrrev_b32 v11, 1, v5")
    a("v_and_b32 v11, 3, v11")
    a("v_and_b32 v12, 3, v0")
    a("v_lshlrev_b32 v13, 7, v5")
    a("v_lshl_add_u32 v13, v12, 3, v13")
    a("v_add_u32 v13, s49, v13")
    for mt in range(4):
        a(f"v_xor_b32 v12, {mt}, v11")
        a(f"v_lshl_add_u32 v{14+mt}, v12, 5, v13")
    ACC = 32
    W0, W1 = None, None
    WF = [248 - 0, None]
    def readw(buf, kbl):
        slot = kbl % 8
        for mt in range(4):
            for rho in range(2):
                a(f"ds_read_b64_tr_b16 {ar(buf+4*mt+2*rho,2)}, v{14+mt} offset:{slot*4096 + rho*2048}")
    def rem_after(kbl, issued_upto):
        if kbl < DEPTH:
            return (DEPTH - 1 - kbl) * 8 + NX + 8 * max(0, issued_upto - (DEPTH - 1))
        return 8 * (issued_upto - kbl)
    issued = DEPTH - 1
    a(f"s_waitcnt vmcnt({rem_after(0, issued)})")
    readw(0, 0)
    for kbl in range(14):
        cur = 16 * (kbl % 2)
        if kbl + DEPTH < 14 and kbl >= 1:
            pass
        if kbl + DEPTH < 14:
            if kbl == 0:
                pass
            issue(kbl + DEPTH); issued = kbl + DEPTH
        a("s_waitcnt lgkmcnt(0)")
        if kbl + 1 < 14:
            a(f"s_waitcnt vmcnt({rem_after(kbl+1, issued)})")
            readw(16 - cur, kbl + 1)
        slot = kbl % 8
        for mt in range(4):
            for nt in range(4):
                d = vr(ACC + 4*(mt*4+nt), 4)
                a(f"v_mfma_f32_16x16x32_bf16 {d}, {ar(cur+4*mt,4)}, {vr(HR+16*slot+4*nt,4)}, {'0' if kbl == 0 else d}")
    a("s_waitcnt vmcnt(0) lgkmcnt(0)")
    a("s_barrier")
    a("s_lshl_b32 s56, s3, 12")
    a("v_add_u32 v20, s56, v3")
    a("s_nop 7")
    for nt in range(4):
        for mt in range(4):
            a(f"ds_write_b128 v20, {vr(ACC+4*(mt*4+nt),4)} offset:{nt*16384 + mt*1024}")
    a("s_lshl_b32 s56, s3, 14")
    a("v_add_u32 v21, s56, v3")
    for mt in range(4):
        a(f"v_lshlrev_b32 v{24}, 16, v{B2+2*mt}")
        a(f"v_and_b32 v{25}, s45, v{B2+2*mt}")
        a(f"v_lshlrev_b32 v{26}, 16, v{B2+2*mt+1}")
        a(f"v_and_b32 v{27}, s45, v{B2+2*mt+1}")
        a(f"v_pk_add_f32 {vr(RES+4*mt,2)}, {vr(RES+4*mt,2)}, v[24:25]")
        a(f"v_pk_add_f32 {vr(RES+4*mt+2,2)}, {vr(RES+4*mt+2,2)}, v[26:27]")
    a("s_waitcnt lgkmcnt(0)")
    a("s_barrier")
    for mt in range(4):
        for w in range(4):
            a(f"ds_read_b128 {vr(HR+16*mt+4*w,4)}, v21 offset:{w*4096 + mt*1024}")
    for mt in range(4):
        a(f"s_waitcnt lgkmcnt({12-4*mt})")
        for w in range(4):
            for h in range(2):
                a(f"v_pk_add_f32 {vr(RES+4*mt+2*h,2)}, {vr(RES+4*mt+2*h,2)}, {vr(HR+16*mt+4*w+2*h,2)}")
        a(f"v_cvt_pk_bf16_f32 v{24+2*mt}, v{RES+4*mt}, v{RES+4*mt+1}")
        a(f"v_cvt_pk_bf16_f32 v{25+2*mt}, v{RES+4*mt+2}, v{RES+4*mt+3}")
        a(f"buffer_store_dwordx2 {vr(24+2*mt,2)}, v10, s[24:27], 0 offen offset:{32*mt}")
    a.label("P4_END")
    a("s_endpgm")

def kd(name, vgpr, accum, sgpr=96):
    return f""".amdhsa_kernel {name}
  .amdhsa_next_free_vgpr {vgpr}
  .amdhsa_next_free_sgpr {sgpr}
  .amdhsa_accum_offset {accum}
  .amdhsa_group_segment_fixed_size 0
  .amdhsa_kernarg_size 112
  .amdhsa_user_sgpr_count 2
  .amdhsa_user_sgpr_kernarg_segment_ptr 1
  .amdhsa_system_sgpr_workgroup_id_x 1
.end_amdhsa_kernel
"""

def main(out):
    ref = open(f"cdna_kernels/{NAME}.s.ref").read().split('\n')
    hdr = [l for l in ref if l.startswith(';') and '@launch' not in l and 'Override' not in l and 'grid=ceil' not in l]
    hdr = hdr[:15]
    txt = '\n'.join(hdr) + '\n'
    txt += "; @launch kernel=p1_kernel grid=(256,1,1) block=(256,1,1) lds=16384\n"
    txt += "; @launch kernel=p2_kernel grid=(256,1,1) block=(256,1,1) lds=25600\n"
    txt += "; @launch kernel=p3_kernel grid=(256,1,1) block=(256,1,1) lds=153600\n"
    txt += "; @launch kernel=p4_kernel grid=(256,1,1) block=(256,1,1) lds=131072\n"
    txt += '.amdgcn_target "amdgcn-amd-amdhsa--gfx950"\n.text\n'
    for n in ("p1_kernel", "p2_kernel", "p3_kernel", "p4_kernel"):
        txt += f".globl {n}\n.type {n},@function\n"
    for g in (gen_p1, gen_p2, gen_p3, gen_p4):
        a = Asm(); g(a); txt += a.render()
    txt += '.section .rodata,"a"\n'
    for n, v, acc in (("p1_kernel", 256, 256), ("p2_kernel", 384, 256), ("p3_kernel", 256, 256), ("p4_kernel", 288, 256)):
        txt += ".p2align 6\n" + kd(n, v, acc)
    open(out, "w").write(txt)

if __name__ == "__main__":
    main(sys.argv[1] if len(sys.argv) > 1 else f"cdna_kernels/{NAME}.s")
```
